```python
import torch

def _softmax(x, axis=-1):
    return torch.softmax(x, dim=axis)

def _gelu(x):
    return torch.nn.functional.gelu(x, approximate='tanh')

def _silu(x):
    return torch.nn.functional.silu(x)

def _sigmoid(x):
    return torch.sigmoid(x)

def _layernorm(x, axis=-1, eps=1e-05):
    m = x.mean(dim=axis, keepdim=True)
    v = x.var(dim=axis, keepdim=True, unbiased=False)
    return (x - m) / torch.sqrt(v + eps)

def _scatter_add(tgt, idx, src, axis=0):
    return tgt.clone().index_add_(axis, idx, src)

def _segment_sum(src, seg, n):
    out = torch.zeros((n,) + src.shape[1:], dtype=src.dtype)
    return out.index_add_(0, seg, src)

def _pad(x, pw):
    flat = tuple((v for pair in reversed(pw) for v in pair))
    return torch.nn.functional.pad(x, flat)
kernel_name = 'standalone__autoregressive_conv_wavenet__speech'

def setup_inputs():

    _w = lambda a: (lambda t: t.to(torch.bfloat16) if t.is_floating_point() else t)(torch.as_tensor(a))
    B, T, D, K = (2, 4000, 512, 15)
    return {'x': _w((lambda *s: torch.randn(*s, dtype=torch.bfloat16) * 0.1)(B, T, D)), 'w': _w((lambda *s: torch.randn(*s, dtype=torch.bfloat16) * 0.1)(K, D, 2 * D)), 'w_o': _w((lambda *s: torch.randn(*s, dtype=torch.bfloat16) * 0.05)(D, D))}

def reference(x, w, w_o):
    B, T, D = x.shape
    K = w.shape[0]
    dil = 2
    pad = (K - 1) * dil
    xp = _pad(x, ((0, 0), (pad, 0), (0, 0)))
    h = torch.einsum('btc,cd->btd', xp[:, pad:pad + T, :], w[0])
    for i in range(1, K):
        off = pad - i * dil
        h = h + torch.einsum('btc,cd->btd', xp[:, off:off + T, :], w[i])
    f = h[..., :D].clone()
    g = h[..., D:].clone()
    z = torch.tanh(f) * _sigmoid(g)
    return z @ w_o
```

```python
import re

class Asm:
    def __init__(self):
        self.lines = []
    def __call__(self, s):
        for l in s.split("\n"):
            l = l.strip()
            if l: self.lines.append(l)
    def text(self):
        out = []
        for l in self.lines:
            if l.endswith(":") or l.startswith(".") or l.startswith(";"): out.append(l)
            else: out.append("    " + l)
        return "\n".join(out) + "\n"

def vr(b, n=1, k="v"):
    return f"{k}{b}" if n == 1 else f"{k}[{b}:{b+n-1}]"
def ar(b, n=1): return vr(b, n, "a")
def sr(b, n=1): return vr(b, n, "s")

class R:
    def __init__(self, k, b, n=1): self.k, self.b, self.n = k, b, n
    def __getitem__(self, i):
        if isinstance(i, slice):
            return R(self.k, self.b + i.start, i.stop - i.start)
        assert 0 <= i < self.n
        return R(self.k, self.b + i, 1)
    def q(self, i, n=4):
        assert (i + 1) * n <= self.n
        return R(self.k, self.b + i * n, n)
    def __str__(self): return vr(self.b, self.n, self.k)
    __repr__ = __str__
    def __format__(self, spec): return str(self)

class Alloc:
    def __init__(self, k, start=0, limit=256): self.k, self.p, self.limit = k, start, limit
    def __call__(self, n, align=None):
        if align is None: align = 1 if n == 1 else (2 if n == 2 else 4)
        self.p = (self.p + align - 1) // align * align
        r = R(self.k, self.p, n); self.p += n
        assert self.p <= self.limit, f"out of {self.k} regs: {self.p}"
        return r

def kd(name, vgpr, accum, sgpr=102):
    return f""".section .rodata,"a"
.p2align 6
.amdhsa_kernel {name}
  .amdhsa_next_free_vgpr {vgpr}
  .amdhsa_next_free_sgpr {sgpr}
  .amdhsa_accum_offset {accum}
  .amdhsa_group_segment_fixed_size 0
  .amdhsa_kernarg_size 48
  .amdhsa_user_sgpr_count 2
  .amdhsa_user_sgpr_kernarg_segment_ptr 1
  .amdhsa_system_sgpr_workgroup_id_x 1
.end_amdhsa_kernel
.text
"""

_reg = re.compile(r"^-?\|?(?:abs\()?([vas])(?:(\d+)|\[(\d+):(\d+)\])\)?\|?$")
def regs(op):
    op = op.strip()
    if op == "vcc": return {("s", "vcc")}
    if op == "exec": return {("s", "exec")}
    if op == "m0": return {("s", "m0")}
    m = _reg.match(op)
    if not m: return set()
    k = m.group(1)
    if m.group(2) is not None: return {(k, int(m.group(2)))}
    return {(k, i) for i in range(int(m.group(3)), int(m.group(4)) + 1)}

TRANS = ("v_exp_f32", "v_log_f32", "v_rcp_f32", "v_rsq_f32", "v_sqrt_f32", "v_sin_f32", "v_cos_f32")
def parse(line):
    line = line.split(";")[0].strip()
    if not line or line.endswith(":") or line.startswith("."): return None
    parts = line.split(None, 1)
    mn = parts[0]; rest = parts[1] if len(parts) > 1 else ""
    ops = [o.strip() for o in rest.split(",")] if rest else []
    if ops:
        last = ops[-1].split()
        mods = last[1:]; ops[-1] = last[0]
    else: mods = []
    d = dict(mn=mn, w=set(), r=set(), cls="other", c=set(), ab=set(), text=line, states=1, sdata=set())
    if mn == "s_nop": d["states"] = int(ops[0], 0) + 1; d["cls"] = "salu"
    elif mn.startswith("v_mfma"):
        d["cls"] = "mfma"; d["w"] = regs(ops[0]); d["ab"] = regs(ops[1]) | regs(ops[2]); d["c"] = regs(ops[3]); d["r"] = d["ab"] | d["c"]
        d["passes"] = 8 if "32x32" in mn else 4
    elif mn.startswith("buffer_load") or mn.startswith("global_load"):
        d["cls"] = "vmem"
        if "lds" in mods or "_lds_" in mn:
            for o in ops: d["r"] |= regs(o)
            d["r"] |= {("s", "m0")}; d["dma"] = True
        else:
            d["w"] = regs(ops[0])
            for o in ops[1:]: d["r"] |= regs(o)
    elif mn.startswith("buffer_store") or mn.startswith("buffer_atomic"):
        d["cls"] = "vmem"
        for o in ops: d["r"] |= regs(o)
        if "x4" in mn or "x3" in mn: d["sdata"] = regs(ops[0])
    elif mn.startswith("ds_read"):
        d["cls"] = "ds"; d["w"] = regs(ops[0]); d["r"] = regs(ops[1])
    elif mn.startswith("ds_write"):
        d["cls"] = "ds"
        for o in ops: d["r"] |= regs(o)
    elif mn.startswith("v_"):
        d["cls"] = "valu"
        base = mn.replace("_e32", "").replace("_e64", "")
        d["trans"] = base in TRANS
        d["w"] = regs(ops[0])
        for o in ops[1:]: d["r"] |= regs(o)
        if base.startswith("v_swap") or base.startswith("v_permlane"):
            d["w"] |= regs(ops[1]); d["r"] |= regs(ops[0])
        if base.startswith("v_fmac") or base.startswith("v_writelane"): d["r"] |= regs(ops[0])
        if "_co_" in base: d["w"] |= regs(ops[1])
        d["dpp"] = "_dpp" in mn
        d["lane"] = base.startswith("v_readlane") or base.startswith("v_readfirstlane")
        d["perm"] = base.startswith("v_permlane")
    elif mn.startswith("s_"):
        d["cls"] = "salu"
        if ops and not mn.startswith(("s_cmp", "s_waitcnt", "s_cbranch", "s_branch", "s_barrier", "s_setprio", "s_sleep", "s_endpgm")):
            d["w"] = regs(ops[0])
            for o in ops[1:]: d["r"] |= regs(o)
            if "saveexec" in mn: d["w"] |= {("s", "exec")}
        else:
            for o in ops: d["r"] |= regs(o)
    return d

def need(p, c):
    n = 0
    pv = {x for x in p["w"] if x[0] in "va"}; ps = {x for x in p["w"] if x[0] == "s"}
    if p["cls"] == "mfma":
        big = p["passes"] == 8
        if c["cls"] == "mfma":
            if pv & c["ab"]: n = max(n, 12 if big else 8)
            if pv & c["c"] and not (pv == c["c"] and p["passes"] == c["passes"]): n = max(n, 10 if big else 6)
            if pv & c["w"] and not (pv & c["c"]): n = max(n, 10 if big else 6)
        elif c["cls"] in ("valu", "vmem", "ds"):
            if pv & (c["r"] | c["w"]): n = max(n, 12 if big else 8)
            if c["cls"] == "valu" and p["c"] & c["w"]: n = max(n, 7 if big else 3)
    if p["cls"] == "valu":
        if c["cls"] == "mfma" and pv & c["r"]: n = max(n, 2)
        if c["cls"] == "mfma" and ("s", "exec") in ps: n = max(n, 4)
        if c["cls"] == "valu":
            if p.get("trans") and not c.get("trans") and pv & c["r"]: n = max(n, 1)
            if c.get("dpp") and pv & c["r"]: n = max(n, 2)
            if c.get("perm") and pv & c["r"]: n = max(n, 2)
            if c.get("lane") and pv & c["r"]: n = max(n, 1)
            if ps & c["r"]: n = max(n, 2)
        if c["cls"] == "vmem" and ps & c["r"]: n = max(n, 5)
        if c["cls"] == "salu" and ps & c["r"]: n = max(n, 1)
    if p["cls"] == "salu" and ("s", "m0") in ps and c.get("dma"): n = max(n, 1)
    if p["cls"] == "vmem" and p["sdata"] & c["w"]: n = max(n, 2 if c["cls"] == "valu" else 1)
    return n

def check(lines):
    ins = []; labels = {}
    for l in lines:
        s = l.split(";")[0].strip()
        if s.endswith(":"): labels[s[:-1]] = len(ins); continue
        d = parse(l)
        if d: ins.append(d)
    def succ(i):
        d = ins[i]; mn = d["mn"]
        if mn == "s_endpgm": return []
        if mn == "s_branch": return [labels[d["text"].split()[1]]]
        o = [i + 1] if i + 1 < len(ins) else []
        if mn.startswith("s_cbranch"): o.append(labels[d["text"].split()[1]])
        return o
    bad = []
    for i, p in enumerate(ins):
        if p["cls"] not in ("mfma", "valu", "salu", "vmem"): continue
        stack = [(j, 0) for j in succ(i)]; seen = set()
        while stack:
            j, dist = stack.pop()
            if dist >= 12 or (j, dist) in seen or j >= len(ins): continue
            seen.add((j, dist))
            n = need(p, ins[j])
            if n > dist: bad.append((i, p["text"], ins[j]["text"], n, dist))
            for k in succ(j): stack.append((k, dist + ins[j]["states"]))
    return bad

class Cnt:
    def __init__(self, A, vm=(), lg=()):
        self.A = A; self.q = {"vm": list(vm), "lg": list(lg)}
    def vm(self, ins, tag): self.A(ins); self.q["vm"].append(tag)
    def lg(self, ins, tag): self.A(ins); self.q["lg"].append(tag)
    def _n(self, kind, tag):
        q = self.q[kind]
        if tag not in q: return None
        i = len(q) - 1 - q[::-1].index(tag)
        n = len(q) - 1 - i
        del q[:i + 1]
        return n
    def wait(self, vm=None, lg=None):
        s = []
        if vm is not None:
            n = self._n("vm", vm)
            if n is not None:
                assert n <= 63
                s.append(f"vmcnt({n})")
        if lg is not None:
            n = self._n("lg", lg)
            if n is not None:
                assert n <= 15, n
                s.append(f"lgkmcnt({n})")
        if s: self.A("s_waitcnt " + " ".join(s))
    def wait_all(self, vm=False, lg=False):
        s = []
        if vm: s.append("vmcnt(0)"); self.q["vm"] = []
        if lg: s.append("lgkmcnt(0)"); self.q["lg"] = []
        self.A("s_waitcnt " + " ".join(s))
```

```python
WS_V   = 0
V_SIZE = 10485760
WS_WO  = 12 << 20
WO_SIZE = 524288
WS_P   = 16 << 20
P_SIZE = 20971520
WS_STAMP = 64 << 20
X_SIZE = 8192000
W_SIZE = 15728640

def srd(A, d, lo, hi, off, size):
    if off:
        A(f"s_add_u32 s{d}, s{lo}, {off}\ns_addc_u32 s{d+1}, s{hi}, 0")
    else:
        A(f"s_mov_b32 s{d}, s{lo}\ns_mov_b32 s{d+1}, s{hi}")
    A(f"s_mov_b32 s{d+2}, {size}\ns_mov_b32 s{d+3}, 0x20000")

def head(A, name):
    A(f".globl {name}\n.p2align 8\n.type {name},@function\n{name}:")

def stamp(A, i):
    A(f"s_memtime s[{84+4*i}:{85+4*i}]\ns_memrealtime s[{86+4*i}:{87+4*i}]")
def stamp_store(A, n, kidx, wslo, wshi, wave_s, tmp):
    srd(A, 24, wslo, wshi, WS_STAMP + kidx * 0x40000, 0x40000)
    A("s_waitcnt lgkmcnt(0)")
    A(f"s_lshl_b32 s28, s2, 8\ns_lshl_b32 s29, s{wave_s}, 6\ns_add_u32 s28, s28, s29")
    A(f"v_mov_b32 v{tmp+4}, s28")
    for i in range(n):
        for j in range(4): A(f"v_mov_b32 v{tmp+j}, s{84+4*i+j}")
        A(f"buffer_store_dwordx4 v[{tmp}:{tmp+3}], v{tmp+4}, s[24:27], 0 offen offset:{16*i}")
        A("s_nop 1")

import struct
def float_hex(x):
    return "0x%08x" % struct.unpack("<I", struct.pack("<f", float(x)))[0]
```

```python
from asmlib import *
from common import *
GRID_A = 256
LDS_A = 131072

def gen_a(A, name="conva_kernel", stamps=False, warm=True, stflag=""):
    va = Alloc("v", 1, 128)
    vX = va(1); vS = va(1); t = va(8)
    vTR = va(4); vDW = va(2); vDR = va(4)
    TWF = va(32); AF = va(32); D = va(32); PK = va(8)
    sWAVE = 36
    head(A, name)
    A(f"s_cmp_ge_u32 s2, {256 if warm else 192}\ns_cbranch_scc1 LA_end")
    if stamps: stamp(A, 0)
    A("s_load_dwordx4 s[4:7], s[0:1], 0\ns_load_dwordx2 s[20:21], s[0:1], 16\ns_load_dwordx2 s[22:23], s[0:1], 40")
    A(f"v_lshrrev_b32 {t[0]}, 6, v0\nv_and_b32 v0, 63, v0")
    A(f"v_readfirstlane_b32 s{sWAVE}, {t[0]}")
    A("s_cmp_ge_u32 s2, 160\ns_cbranch_scc1 LA_other")
    A("s_lshr_b32 s30, s2, 3\ns_and_b32 s31, s2, 7")
    A(f"s_lshl_b32 s32, s30, 2\ns_add_u32 s32, s32, s{sWAVE}")
    A("s_cmp_ge_u32 s32, 40\ns_cselect_b32 s33, 40, 0\ns_cselect_b32 s34, 4096000, 0\ns_sub_u32 s32, s32, s33")
    A("s_mul_i32 s32, s32, 102400\ns_lshl_b32 s33, s31, 7\ns_add_u32 s32, s32, s33\ns_sub_u32 s32, s32, 28672")
    A(f"v_lshrrev_b32 {t[0]}, 3, v0\nv_lshlrev_b32 {vX}, 11, {t[0]}")
    A(f"v_and_b32 {t[0]}, 6, {t[0]}\nv_and_b32 {t[1]}, 7, v0\nv_xor_b32 {t[0]}, {t[0]}, {t[1]}")
    A(f"v_lshl_add_u32 {vX}, {t[0]}, 4, {vX}\nv_add_u32 {vX}, s32, {vX}")
    A(f"s_lshl_b32 s35, s{sWAVE}, 14")
    A("s_waitcnt lgkmcnt(0)")
    A("s_add_u32 s8, s4, s34\ns_addc_u32 s9, s5, 0\ns_mov_b32 s10, 4096000\ns_mov_b32 s11, 0x20000")
    C = Cnt(A)
    for par in range(2):
        for i in range(8):
            A(f"s_add_u32 m0, s35, {par*8192 + i*1024}")
            A(f"v_add_u32 {t[2+(i&1)]}, {par*1024 + i*16384}, {vX}")
            C.vm(f"buffer_load_dwordx4 {t[2+(i&1)]}, s[8:11], 0 offen lds", ("x", par))
    srd(A, 12, 22, 23, WS_V, V_SIZE)
    A(f"v_lshrrev_b32 {t[0]}, 2, v0")
    A(f"v_lshlrev_b32 {t[1]}, 7, {t[0]}\nv_add_u32 {t[1]}, s35, {t[1]}")
    A(f"v_and_b32 {t[2]}, 3, v0\nv_lshl_add_u32 {t[1]}, {t[2]}, 3, {t[1]}")
    A(f"v_bfe_u32 {t[0]}, v0, 3, 2")
    for tau in range(4):
        A(f"v_xor_b32 {t[2]}, {tau}, {t[0]}\nv_lshl_add_u32 {vTR[tau]}, {t[2]}, 5, {t[1]}")
    A(f"v_and_b32 {t[0]}, 15, v0\nv_lshlrev_b32 {t[1]}, 9, {t[0]}\nv_lshrrev_b32 {t[2]}, 4, v0\nv_lshl_add_u32 {t[1]}, {t[2]}, 7, {t[1]}")
    A(f"v_add_u32 {t[1]}, 0x10000, {t[1]}\nv_and_b32 {t[0]}, 7, v0\ns_lshl_b32 s33, s{sWAVE}, 1\nv_xor_b32 {t[0]}, s33, {t[0]}")
    A(f"v_lshl_add_u32 {vDW[0]}, {t[0]}, 4, {t[1]}\nv_xor_b32 {vDW[1]}, 16, {vDW[0]}")
    A(f"v_lshrrev_b32 {t[0]}, 3, v0\nv_lshlrev_b32 {t[1]}, 7, {t[0]}\ns_lshl_b32 s33, s{sWAVE}, 13\ns_add_u32 s33, s33, 0x10000\nv_add_u32 {t[1]}, s33, {t[1]}")
    A(f"v_and_b32 {t[0]}, 7, v0\nv_lshrrev_b32 {t[2]}, 5, v0\nv_xor_b32 {t[0]}, {t[0]}, {t[2]}")
    for f3 in range(4):
        A(f"v_xor_b32 {t[2]}, {2*f3}, {t[0]}\nv_lshl_add_u32 {vDR[f3]}, {t[2]}, 4, {t[1]}")
    A(f"v_lshrrev_b32 {t[0]}, 3, v0\nv_lshlrev_b32 {vS}, 8, {t[0]}\nv_and_b32 {t[0]}, 7, v0\nv_lshl_add_u32 {vS}, {t[0]}, 4, {vS}")
    A("s_lshr_b32 s33, s30, 1\ns_cmp_ge_u32 s33, 5\ns_cselect_b32 s37, 153600, 0\ns_lshl_b32 s33, s33, 11\ns_add_u32 s37, s37, s33")
    A(f"s_and_b32 s33, s30, 1\ns_lshl_b32 s33, s33, 7\ns_add_u32 s37, s37, s33\ns_mul_i32 s33, s31, 20480\ns_add_u32 s37, s37, s33")
    A(f"s_mul_i32 s33, s{sWAVE}, {8*327680}\ns_add_u32 s37, s37, s33")
    A(f"v_and_b32 {t[0]}, 15, v0\nv_or_b32 {t[0]}, 1, {t[0]}\nv_cvt_f32_u32 {t[0]}, {t[0]}")
    for g in range(1, 4): A(f"v_add_f32 {t[g]}, {float_hex(16*g)}, {t[0]}")
    A(f"v_and_b32 {t[4]}, 1, v0\nv_cvt_f32_u32 {t[4]}, {t[4]}\nv_mul_f32 {t[4]}, 0x3e800000, {t[4]}")
    A(f"v_lshrrev_b32 {t[5]}, 4, v0\nv_cvt_f32_u32 {t[5]}, {t[5]}\nv_mul_f32 {t[5]}, {float_hex(4/128)}, {t[5]}")
    for ks in range(2):
        for x in range(8): A(f"v_add_f32 {AF[x]}, {float_hex((32*ks + 16*(x>>2) + (x&3))/128)}, {t[5]}")
        for g in range(4):
            for x in range(8): A(f"v_fma_f32 {D[x]}, {t[g]}, {AF[x]}, {t[4]}")
            for x in range(8): A(f"v_cos_f32 {D[x]}, {D[x]}")
            for p in range(4): A(f"v_cvt_pk_bf16_f32 {TWF.q(2*g+ks)[p]}, {D[2*p]}, {D[2*p+1]}")
    if stamps: stamp(A, 1); A("s_waitcnt lgkmcnt(0)")
    units = [(par, kc) for par in range(2) for kc in range(2)]
    def reads(n):
        par, kc = units[n]
        C.wait(vm=("x", par))
        for tl in range(2):
            for ks in range(2):
                for h in range(2):
                    dst = AF.q(n & 1, 16).q(2*tl + ks)[2*h:2*h+2]
                    C.lg(f"ds_read_b64_tr_b16 {dst}, {vTR[2*kc+tl]} offset:{par*8192 + (32*ks+16*h)*128}", ("a", n))
    reads(0)
    for n, (par, kc) in enumerate(units):
        if n + 1 < 4: reads(n + 1)
        C.wait(lg=("a", n))
        af = AF.q(n & 1, 16)
        for ks in range(2):
            for g in range(4):
                for tl in range(2):
                    d = D.q(2*g + tl)
                    A(f"v_mfma_f32_16x16x32_bf16 {d}, {af.q(2*tl+ks)}, {TWF.q(2*g+ks)}, {d if ks else 0}")
        A("s_nop 1")
        for g in range(4):
            pk = PK.q(g & 1)
            for p in range(4):
                d = D.q(2*g + (p >> 1))
                A(f"v_cvt_pk_bf16_f32 {pk[p]}, {d[2*(p&1)]}, {d[2*(p&1)+1]}")
            C.lg(f"ds_write_b128 {vDW[par]}, {pk} offset:{kc*32768 + g*8192}", "w")
    C.wait_all(lg=True); A("s_barrier")
    if stamps: stamp(A, 2); A("s_waitcnt lgkmcnt(0)")
    OUT = R("v", TWF.b, 64)
    for n in range(16):
        kc, fl = n & 1, n >> 1
        C.lg(f"ds_read_b128 {OUT.q(n)}, {vDR[fl&3]} offset:{kc*32768 + fl*1024}", ("o", n))
        if n == 11:
            pass
        if n >= 8:
            m = n - 8
            C.wait(lg=("o", m))
            A(f"s_add_u32 s33, s37, {(m>>1)*327680 + (m&1)*10240}")
            A(f"buffer_store_dwordx4 {OUT.q(m)}, {vS}, s[12:15], s33 offen {stflag}")
    for m in range(8, 16):
        C.wait(lg=("o", m))
        A(f"s_add_u32 s33, s37, {(m>>1)*327680 + (m&1)*10240}")
        A(f"buffer_store_dwordx4 {OUT.q(m)}, {vS}, s[12:15], s33 offen {stflag}")
    A("s_branch LA_fin")
    A("LA_other:")
    if stamps: stamp(A, 1); stamp(A, 2)
    if warm: A("s_cmp_ge_u32 s2, 192\ns_cbranch_scc1 LA_warm")
    A("s_sub_u32 s30, s2, 160")
    A("s_and_b32 s31, s30, 3\ns_lshr_b32 s32, s30, 4\ns_lshl_b32 s32, s32, 2\ns_add_u32 s31, s31, s32\ns_lshl_b32 s31, s31, 16")
    A("s_bfe_u32 s32, s30, 0x20002\ns_lshl_b32 s32, s32, 14\ns_add_u32 s31, s31, s32")
    A(f"s_lshl_b32 s32, s{sWAVE}, 8\ns_add_u32 s31, s31, s32")
    A(f"v_lshrrev_b32 {t[0]}, 5, v0\nv_lshlrev_b32 {vX}, 12, {t[0]}\nv_and_b32 {t[0]}, 31, v0\nv_lshl_add_u32 {vX}, {t[0]}, 3, {vX}")
    A("s_add_u32 s32, s31, 8192")
    A("s_waitcnt lgkmcnt(0)")
    srd(A, 8, 20, 21, 0, WO_SIZE); srd(A, 12, 22, 23, WS_WO, WO_SIZE)
    for e in range(8):
        A(f"buffer_load_dwordx2 {AF.q(e, 2)}, {vX}, s[8:11], s{31 + (e>>2)} offen offset:{(e&3)*1024}")
    A(f"v_lshlrev_b32 {vS}, 4, v0\ns_lshl_b32 s33, s{sWAVE}, 17\ns_lshl_b32 s34, s30, 12\ns_add_u32 s33, s33, s34")
    A("s_mov_b32 s34, 0x05040100\ns_mov_b32 s35, 0x07060302\ns_waitcnt vmcnt(0)")
    for tau in range(4):
        for p in range(4):
            A(f"v_perm_b32 {D.q(tau)[p]}, {AF.q(2*p+1, 2)[tau>>1]}, {AF.q(2*p, 2)[tau>>1]}, s{34 + (tau&1)}")
        A(f"buffer_store_dwordx4 {D.q(tau)}, {vS}, s[12:15], s33 offen offset:{tau*1024} {stflag}")
    if warm:
        A("s_branch LA_fin")
        A("LA_warm:")
        A(f"s_sub_u32 s30, s2, 192\ns_mul_i32 s30, s30, 245760\ns_lshl_b32 s31, s{sWAVE}, 12\ns_add_u32 s30, s30, s31\ns_add_u32 s31, s30, 245760")
        A(f"v_lshlrev_b32 {vX}, 4, v0\ns_waitcnt lgkmcnt(0)")
        srd(A, 8, 6, 7, 0, W_SIZE)
        A("LA_wl:")
        for i in range(4): A(f"buffer_load_dwordx4 {D.q(i)}, {vX}, s[8:11], s30 offen offset:{i*1024}")
        A("s_add_u32 s30, s30, 16384\ns_waitcnt vmcnt(12)\ns_cmp_lt_u32 s30, s31\ns_cbranch_scc1 LA_wl")
    A("LA_fin:")
    if stamps:
        A("s_waitcnt vmcnt(0)"); stamp(A, 3); stamp_store(A, 4, 0, 22, 23, sWAVE, t.b)
    A("LA_end:\ns_endpgm")
    return kd(name, 128, 128)
```

```python
from asmlib import *
from common import *

TS = 4128
RAW = 15 * TS
WL = 2 * RAW
LDS_B = WL + 2 * 16384

def gen_b(A, name="convb_kernel", a=8, rotw=2, rotv=1, stamps=False, stflag="", abl="", nnt=0):
    b = 32 // a; na = 16 // a
    va = Alloc("v", 1); aa = Alloc("a")
    vW = va(1); vV = va(1); vT1 = va(1); vT2 = va(1); vWw = va(1); vWr = va(1); vP = va(1)
    tmp = va(8)
    P1 = va(80); P3 = va(80); TD = va(16); PK = va(16)
    Wr = [va(32), aa(32)]
    P2 = aa(80); Vr = [aa(40), aa(40)]; TB = aa(32); TW = aa(8)
    sWAVE, sFP, sCT, sFL, sCL, sCNT = 36, 32, 33, 34, 35, 37
    SO, SM, SV = 50, 65, 44
    head(A, name)
    A("s_cmp_ge_u32 s2, 256\ns_cbranch_scc1 LB_end")
    if stamps: stamp(A, 0)
    A("s_load_dwordx2 s[4:5], s[0:1], 8\ns_load_dwordx2 s[6:7], s[0:1], 40")
    A(f"v_lshrrev_b32 {tmp[0]}, 6, v0")
    A("s_and_b32 s30, s2, 7\ns_lshr_b32 s31, s2, 3")
    A(f"v_readfirstlane_b32 s{sWAVE}, {tmp[0]}")
    A(f"s_and_b32 s{sFP}, s30, {na-1}\ns_lshr_b32 s{sCT}, s30, {na.bit_length()-1}")
    A(f"s_and_b32 s{sFL}, s31, {a-1}\ns_lshr_b32 s{sCL}, s31, {a.bit_length()-1}")
    A(f"s_mul_i32 s{sFP}, s{sFP}, {a}\ns_add_u32 s{sFP}, s{sFP}, s{sFL}")
    A(f"s_mul_i32 s{sCT}, s{sCT}, {b}\ns_add_u32 s{sCT}, s{sCT}, s{sCL}")
    A(f"v_lshrrev_b32 {vW}, 3, v0\nv_lshlrev_b32 {vW}, 11, {vW}\nv_and_b32 {tmp[0]}, 7, v0")
    A(f"v_lshl_add_u32 {vW}, {tmp[0]}, 4, {vW}\ns_lshl_b32 s38, s{sCT}, 7\nv_add_u32 {vW}, s38, {vW}")
    A("v_and_b32 v0, 63, v0")
    A(f"s_mul_i32 s38, s{sFP}, 655360\ns_mul_i32 s39, s{sWAVE}, 163840\ns_add_u32 s38, s38, s39")
    A(f"v_lshlrev_b32 {vV}, 4, v0\nv_add_u32 {vV}, s38, {vV}")
    A(f"s_lshl_b32 s39, s{sWAVE}, 10\ns_mul_i32 s40, s{sFL}, {rotw}")
    assert (a - 1) * rotw < 30
    A("s_cmp_ge_u32 s40, 15\ns_cselect_b32 s41, 15, 0\ns_sub_u32 s40, s40, s41")
    for i in range(15):
        A(f"s_lshl_b32 s{SO+i}, s40, 20\ns_mul_i32 s{SM+i}, s40, {TS}\ns_add_u32 s{SM+i}, s{SM+i}, s39")
        if i < 14: A("s_add_u32 s40, s40, 1\ns_cmp_eq_u32 s40, 15\ns_cselect_b32 s40, 0, s40")
    A(f"s_mul_i32 s40, s{sCL}, {rotv}")
    assert (b - 1) * rotv < 10
    A("s_cmp_ge_u32 s40, 5\ns_cselect_b32 s41, 5, 0\ns_sub_u32 s40, s40, s41")
    for i in range(5):
        A(f"s_lshl_b32 s{SV+i}, s40, 11")
        if i < 4: A("s_add_u32 s40, s40, 1\ns_cmp_eq_u32 s40, 5\ns_cselect_b32 s40, 0, s40")
    A("s_waitcnt lgkmcnt(0)")
    srd(A, 8, 4, 5, 0, W_SIZE); srd(A, 12, 6, 7, WS_V, V_SIZE); srd(A, 16, 6, 7, WS_P, P_SIZE)
    C = Cnt(A)
    def dma(i, buf, tag, between=None):
        A(f"s_add_u32 m0, s{SM+i}, {buf*RAW}" if buf else f"s_mov_b32 m0, s{SM+i}")
        A(between if between else "s_nop 0")
        C.vm(f"buffer_load_dwordx4 {vW}, s[8:11], s{SO+i} offen {'nt ' if i < nnt else ''}lds", tag)
    def vload(i, s, tag):
        C.vm(f"buffer_load_dwordx4 {Vr[s].q(i)}, {vV}, s[12:15], s{SV+i//2} offen offset:{(i&1)*1024}", tag)
    for i in range(15): dma(i, 0, "r0")
    A(f"v_add_u32 {vW}, 0x10000, {vW}")
    for i in range(15): dma(i, 1, "r1")
    A(f"v_add_u32 {vW}, 0x10000, {vW}")
    for i in range(10): vload(i, 0, ("v", i))
    A(f"v_add_u32 {vV}, 10240, {vV}")
    t = tmp
    A(f"v_bfe_u32 {t[0]}, v0, 2, 3")
    A(f"v_mul_u32_u24 {vT1}, {TS}, {t[0]}")
    A(f"v_lshrrev_b32 {t[1]}, 5, v0\nv_lshl_add_u32 {vT1}, {t[1]}, 9, {vT1}")
    A(f"v_and_b32 {t[1]}, 3, v0\nv_lshl_add_u32 {vT1}, {t[1]}, 3, {vT1}")
    A(f"s_lshl_b32 s38, s{sWAVE}, 5\nv_add_u32 {vT1}, s38, {vT1}")
    A(f"v_add_u32 {vT2}, {8*TS}, {vT1}\nv_cmp_eq_u32 vcc, 7, {t[0]}")
    A(f"s_lshl_b32 s38, s{sWAVE}, 12\ns_add_u32 s38, s38, {WL}")
    A(f"v_cndmask_b32 {vT2}, {vT2}, {vT1}, vcc")
    A(f"v_lshlrev_b32 {vWw}, 4, v0\nv_add_u32 {vWw}, s38, {vWw}")
    A(f"s_lshr_b32 s38, s{sWAVE}, 1\ns_lshl_b32 s38, s38, 11\ns_add_u32 s38, s38, {WL}")
    A(f"v_lshlrev_b32 {vWr}, 4, v0\nv_add_u32 {vWr}, s38, {vWr}")
    A(f"v_lshrrev_b32 {t[1]}, 4, v0\nv_lshlrev_b32 {vP}, 19, {t[1]}\nv_and_b32 {t[1]}, 15, v0\nv_lshl_add_u32 {vP}, {t[1]}, 4, {vP}")
    A(f"v_and_b32 {t[0]}, 2, v0\ns_lshl_b32 s38, s{sFP}, 2\ns_add_u32 s38, s38, 1\nv_add_u32 {t[0]}, s38, {t[0]}")
    A(f"v_cvt_f32_u32 {t[0]}, {t[0]}\nv_mul_f32 {t[0]}, 0x3c000000, {t[0]}")
    A(f"v_and_b32 {t[1]}, 1, v0\nv_cvt_f32_u32 {t[1]}, {t[1]}\nv_mul_f32 {t[1]}, 0x3e800000, {t[1]}")
    A(f"v_bfe_u32 {t[2]}, v0, 4, 1\nv_lshlrev_b32 {t[3]}, 2, {t[2]}\nv_cvt_f32_u32 {t[3]}, {t[3]}")
    A(f"v_fma_f32 {t[1]}, {t[3]}, {t[0]}, {t[1]}")
    A(f"s_cmp_lt_u32 s{sCT}, 8\ns_cselect_b32 s38, 0x40000000, 1.0")
    taps = [0, 1, 2, 3, 8, 9, 10, 11]
    for x, tp in enumerate(taps):
        A(f"s_mov_b32 s39, {float_hex(tp)}")
        A(f"v_fma_f32 {TD[x]}, {t[0]}, s39, {t[1]}")
        A(f"v_cos_f32 {TD[x]}, {TD[x]}")
    for x in range(8): A(f"v_mul_f32 {TD[x]}, s38, {TD[x]}")
    A(f"v_cmp_eq_u32 vcc, 0, {t[2]}\ns_nop 1\nv_cndmask_b32 {TD[7]}, 0, {TD[7]}, vcc")
    for p in range(4): A(f"v_cvt_pk_bf16_f32 {PK[p]}, {TD[2*p]}, {TD[2*p+1]}")
    A(f"v_bfe_u32 {t[0]}, v0, 2, 2\nv_lshrrev_b32 {t[1]}, 5, v0\nv_sub_u32 {t[0]}, {t[0]}, {t[1]}")
    for hh in range(2):
        A(f"v_cmp_eq_u32 vcc, {2*hh}, {t[0]}\ns_nop 1")
        for p in range(4):
            A(f"v_cndmask_b32 {t[4+p]}, 0, {PK[p]}, vcc")
        for p in range(4):
            A(f"v_accvgpr_write_b32 {TW[4*hh+p]}, {t[4+p]}")
    for r in (P1, P3):
        for i in range(80): A(f"v_mov_b32 {r[i]}, 0")
    for i in range(80): A(f"v_accvgpr_write_b32 {P2[i]}, 0")
    for i in range(32): A(f"v_accvgpr_write_b32 {Wr[1][i]}, 0")
    for i in range(32, 40): A(f"v_accvgpr_write_b32 {Vr[1][i]}, 0")
    A(f"s_mov_b32 s{sCNT}, 0")

    def trread(e, n, buf):
        hh, hf = n >> 1, n & 1
        dst = TB.q(e & 3, 8)[4*hh + 2*hf: 4*hh + 2*hf + 2]
        C.lg(f"ds_read_b64_tr_b16 {dst}, {vT2 if hf else vT1} offset:{buf*RAW + hh*1024 + (16*(e>>2) + (e&3))*128}", ("t", e))
    def tmfma(e, hh):
        d = TD.q(e & 3)
        return f"v_mfma_f32_16x16x32_bf16 {d}, {TW.q(hh)}, {TB.q(e&3, 8).q(hh)}, {d if hh else 0}"
    def cvt(p, comp):
        return f"v_cvt_pk_bf16_f32 {PK[4*comp+p]}, {TD.q((2*p)&3)[comp]}, {TD.q((2*p+1)&3)[comp]}"
    def wwrite(comp, buf):
        C.lg(f"ds_write_b128 {vWw}, {PK.q(comp)} offset:{buf*16384 + comp*1024}", "ww")
    def wread(n, buf, s):
        C.lg(f"ds_read_b128 {Wr[s].q(n)}, {vWr} offset:{buf*16384 + (n>>1)*4096 + (n&1)*1024}", "wr")
    def tile(tt, s):
        o = []
        vre, vim = Vr[s].q(2*tt), Vr[s].q(2*tt+1)
        for acc, v, im in ((P1, vre, 0), (P3, vre, 1), (P2, vim, 1), (P3, vim, 0)):
            for u in range(4):
                d = acc.q(4*tt + u)
                o.append(f"v_mfma_f32_16x16x32_bf16 {d}, {v}, {Wr[s].q(2*u+im)}, {d}")
        return o
    C.wait(vm="r0"); A("s_barrier")
    for e in range(3):
        for n in range(4): trread(e, n, 0)
    for e in range(8):
        C.wait(lg=("t", e))
        A(tmfma(e, 0)); A(tmfma(e, 1))
        if e + 3 < 8:
            for n in range(4): trread(e + 3, n, 0)
        if e >= 2 and e % 2 == 0:
            A("s_nop 4")
            for comp in range(4): A(cvt(e//2 - 1, comp))
    A("s_nop 7")
    for comp in range(4): A(cvt(3, comp))
    for comp in range(4): wwrite(comp, 0)
    C.wait(vm="r1", lg="ww"); A("s_barrier")
    if stamps: stamp(A, 1); A("s_waitcnt lgkmcnt(0)")
    A(".p2align 6\nLB_loop:")
    for p in range(2):
        assert C.q["vm"] == [("v", i) for i in range(10)] and C.q["lg"] == []
        main = sum((tile(tt, p) for tt in range(4)), [])
        slots = [("d", m) for m in tile(4, 1 - p)]
        mi = 0
        for g in range(8):
            slots += [("t", (g, 0)), ("t", (g, 1))]
            for z in range(6): slots.append(("m", mi)); mi += 1
        while mi < 64: slots.append(("m", mi)); mi += 1
        post = [[] for _ in slots]
        for n in range(8): post[n].append(lambda n=n: wread(n, p, p))
        for e in range(2):
            for n in range(4): post[8 + 4*e + n].append(lambda e=e, n=n: trread(e, n, 1 - p))
        for g in range(6):
            for n in range(4): post[16 + 8*g + 1 + n].append(lambda e=g+2, n=n: trread(e, n, 1 - p))
        for pp in range(4):
            base = 16 + 8*(2*pp + 1) + (5 if pp < 3 else 7)
            for comp in range(4): post[base + 1 + comp].append(lambda pp=pp, comp=comp: A(cvt(pp, comp)))
        for comp in range(4): post[85 + 2*comp].append(lambda comp=comp: wwrite(comp, 1 - p))
        pos = [(2*i + 1) * 94 // 50 for i in range(25)]
        pre = {}
        for i in range(15): pre[pos[i]] = i
        for i in range(10): post[pos[15 + i]].append(lambda i=i: vload(i, 1 - p, ("vn", i)))
        post[pos[14]].append(lambda: A(f"v_add_u32 {vW}, 0x10000, {vW}"))
        post[95].append(lambda: A(f"v_add_u32 {vV}, 10240, {vV}"))
        if p == 1:
            post[pos[14]].append(lambda: A(f"s_add_u32 s{sCNT}, s{sCNT}, 1\ns_cmp_eq_u32 s{sCNT}, 7\ns_cselect_b32 s10, 0, s10"))
            post[pos[14] + 1].append(lambda: A(f"s_cmp_eq_u32 s{sCNT}, 8\ns_cselect_b32 s14, 0, s14"))
        for si, (kind, arg) in enumerate(slots):
            if kind == "t":
                if arg[1] == 0: C.wait(lg=("t", arg[0]))
                ins = tmfma(*arg)
            elif kind == "m":
                if arg % 16 == 0: C.wait(vm=("v", 2*(arg//16)), lg="wr")
                if arg % 16 == 8: C.wait(vm=("v", 2*(arg//16) + 1))
                ins = main[arg]
            else: ins = arg
            if si in pre: dma(pre[si], p, "rn", between=ins)
            else: A(ins)
            for fn in post[si]: fn()
        C.wait(vm="rn", lg="ww")
        C.q["vm"] = [("v", i) for (_, i) in C.q["vm"]]
        A("s_barrier")
    A(f"s_cbranch_scc0 LB_loop")
    if abl:
        i0 = A.lines.index("LB_loop:")
        def keep(l):
            ist = l.startswith("v_mfma") and (f", {TW.q(0)}," in l or f", {TW.q(1)}," in l)
            if "T" in abl and ist: return False
            if "M" in abl and l.startswith("v_mfma") and not ist: return False
            if "R" in abl and l.startswith("ds_read_b64_tr"): return False
            if "D" in abl and l.endswith(" lds"): return False
            if "V" in abl and l.startswith("buffer_load") and not l.endswith(" lds"): return False
            if "W" in abl and (l.startswith("ds_read_b128") or l.startswith("ds_write") or l.startswith("v_cvt")): return False
            return True
        A.lines[i0:] = [l if keep(l) else "s_nop 0" for l in A.lines[i0:]]
    if stamps: stamp(A, 2)
    A(f"s_and_b32 s38, s{sWAVE}, 1\ns_mul_i32 s38, s38, {80*131072}")
    A(f"s_lshr_b32 s39, s{sWAVE}, 1\ns_lshl_b32 s40, s{sFP}, 1\ns_add_u32 s39, s39, s40\ns_lshl_b32 s39, s39, 12\ns_add_u32 s38, s38, s39")
    A(f"s_lshl_b32 s39, s{sCT}, 8\ns_add_u32 s38, s38, s39")
    last = tile(4, 1)
    k = 0
    for tt in range(5):
        A(f"s_lshl_b32 s39, s{SV+tt}, 10\ns_add_u32 s39, s39, s38")
        for r in range(4):
            o = PK.q(k & 3); tq = TD.q(k & 3); k += 1
            for u in range(4):
                if last: A(last.pop(0))
                A(f"v_accvgpr_read_b32 {tq[u]}, {P2.q(4*tt+u)[r]}")
            for u in range(4): A(f"v_sub_f32 {tq[u]}, {P1.q(4*tt+u)[r]}, {tq[u]}")
            for u in range(4): A(f"v_cvt_pk_bf16_f32 {o[u]}, {tq[u]}, {P3.q(4*tt+u)[r]}")
            A(f"buffer_store_dwordx4 {o}, {vP}, s[16:19], s39 offen {stflag}")
            if r < 3: A("s_add_u32 s39, s39, 0x20000")
    if stamps:
        A("s_waitcnt vmcnt(0)"); stamp(A, 3); stamp_store(A, 4, 1, 6, 7, sWAVE, tmp.b)
    A("LB_end:\ns_endpgm")
    return kd(name, 512, 256)


if __name__ == "__main__":
    A = Asm()
    k = gen_b(A)
    for x in check(A.lines): print("HAZ", x)
    open("kb.s", "w").write('.amdgcn_target "amdgcn-amd-amdhsa--gfx950"\n.text\n' + A.text() + k)
```

```python
from asmlib import *
from common import *
import math
GRID_C = 160
BLOCK_C = 256
LDS_C = 65536

def gen_c(A, name, stamps=False, stflag="", NW=5):
    va = Alloc("v", 1); aa = Alloc("a")
    vP = va(1); vWO = va(1); vZw = va(1); vZr = va(1); vO = va(1)
    t = va(16); ZP = va(8)
    ACC = va(128); D = [va(32), va(32)]; AF = va(16)
    PR = aa(128); TW = aa(32); ZF = aa(16); WO = aa(16 * NW)
    sWAVE = 36
    head(A, name)
    A("s_cmp_ge_u32 s2, 160\ns_cbranch_scc1 LC_end")
    if stamps: stamp(A, 0)
    A("s_load_dwordx2 s[4:5], s[0:1], 24\ns_load_dwordx2 s[6:7], s[0:1], 40")
    A(f"v_lshrrev_b32 {t[0]}, 6, v0\nv_and_b32 v0, 63, v0")
    A(f"v_readfirstlane_b32 s{sWAVE}, {t[0]}")
    A(f"v_lshrrev_b32 {t[1]}, 5, v0\nv_lshlrev_b32 {vP}, 14, {t[1]}\nv_bfe_u32 {t[2]}, v0, 4, 1\nv_lshl_add_u32 {vP}, {t[2]}, 11, {vP}")
    A(f"v_and_b32 {t[2]}, 15, v0\nv_lshl_add_u32 {vP}, {t[2]}, 4, {vP}\nv_lshl_add_u32 {vP}, {t[0]}, 8, {vP}")
    A(f"s_lshl_b32 s30, s2, 17")
    A(f"v_lshlrev_b32 {vZr}, 4, v0\nv_lshl_add_u32 {vWO}, {t[0]}, 17, {vZr}\nv_lshl_add_u32 {vZw}, {t[0]}, 11, {vZr}")
    A("s_waitcnt lgkmcnt(0)")
    srd(A, 8, 6, 7, WS_P, P_SIZE); srd(A, 12, 6, 7, WS_WO, WO_SIZE); srd(A, 16, 4, 5, 0, X_SIZE)
    C = Cnt(A)
    for cti in range(2):
        for ks in range(4):
            for r in range(4):
                A(f"s_add_u32 s31, s30, {(8*ks + r)*4096}")
                C.vm(f"buffer_load_dwordx4 {PR.q(cti*16 + ks*4 + r)}, {vP}, s[8:11], s31 offen offset:{cti*1024}", ("p", cti, ks))
    def woload(s, tau):
        if tau == 0: A(f"s_mov_b32 s32, {s*4096}")
        C.vm(f"buffer_load_dwordx4 {WO.q(s % NW, 16).q(tau)}, {vWO}, s[12:15], s32 offen offset:{tau*1024}", ("w", s))
    for s in range(NW):
        for tau in range(4): woload(s, tau)
    A("s_lshr_b32 s33, s2, 1\ns_mul_i32 s33, s33, 100\ns_and_b32 s34, s2, 1\ns_add_u32 s33, s33, s34\ns_lshl_b32 s33, s33, 10")
    A(f"v_lshlrev_b32 {vO}, 13, {t[1]}\nv_and_b32 {t[2]}, 31, v0\nv_lshl_add_u32 {vO}, {t[2]}, 3, {vO}\nv_lshl_add_u32 {vO}, {t[0]}, 8, {vO}")
    sc = -math.log2(math.e) * 2 / 64
    A(f"v_cvt_f32_u32 {t[3]}, {t[2]}\nv_cvt_f32_u32 {t[4]}, {t[1]}\nv_mul_f32 {t[4]}, {float_hex(8)}, {t[4]}")
    A(f"v_cmp_gt_u32 vcc, 18, {t[2]}\nv_mov_b32 {t[5]}, {float_hex(sc)}\ns_nop 0\nv_cndmask_b32 {t[6]}, 0, {t[5]}, vcc")
    A(f"v_mov_b32 {t[7]}, 0x3e800000")
    for tt in range(2):
        A(f"v_add_f32 {t[8]}, {float_hex(14 + 32*tt)}, {t[3]}\nv_mul_f32 {t[8]}, 0x3c000000, {t[8]}")
        for ks in range(4):
            d = D[0].q(ks & 1, 8)
            for r in range(4):
                A(f"v_add_f32 {t[9]}, {float_hex(16*ks + 2*r + 1)}, {t[4]}")
                A(f"v_mul_f32 {d[2*r]}, {t[9]}, {t[8]}\nv_fma_f32 {d[2*r+1]}, {t[9]}, {t[8]}, {t[7]}")
            for x in range(8): A(f"v_cos_f32 {d[x]}, {d[x]}")
            for x in range(8): A(f"v_mul_f32 {d[x]}, {t[5+tt]}, {d[x]}")
            for p in range(4): A(f"v_cvt_pk_bf16_f32 {d[p]}, {d[2*p]}, {d[2*p+1]}")
            for p in range(4): A(f"v_accvgpr_write_b32 {TW.q(4*tt+ks)[p]}, {d[p]}")
    A(f"s_mov_b32 s35, {float_hex(40)}")
    if stamps: stamp(A, 1); A("s_waitcnt lgkmcnt(0)")

    def afread(s, ks, r):
        cti, u = s >> 2, s & 3
        if r == 0: C.wait(vm=("p", cti, ks))
        A(f"v_accvgpr_read_b32 {AF.q(ks)[r]}, {PR.q(cti*16 + ks*4 + r)[u]}")
    def idft(s):
        o = []
        for ks in range(4):
            for tt in range(2):
                d = D[s & 1].q(tt, 16)
                o.append(f"v_mfma_f32_32x32x16_bf16 {d}, {AF.q(ks)}, {TW.q(4*tt+ks)}, {d if ks else 0}")
        return o
    def gate(s):
        o = []
        for tt in range(2):
            d = D[s & 1].q(tt, 16)
            for hf in range(2):
                F = [d[4*hf + i] for i in range(4)]; G = [d[8 + 4*hf + i] for i in range(4)]
                T1 = [t[4*(hf) + i] for i in range(4)]
                for i in range(4):
                    o.append(f"v_min_f32 {F[i]}, s35, {F[i]}"); o.append(f"v_exp_f32 {G[i]}, {G[i]}")
                for i in range(4): o.append(f"v_exp_f32 {F[i]}, {F[i]}")
                for i in range(4): o.append(f"v_add_f32 {T1[i]}, 1.0, {F[i]}")
                for i in range(4): o.append(f"v_fma_f32 {G[i]}, {T1[i]}, {G[i]}, {T1[i]}")
                for i in range(4):
                    o.append(f"v_rcp_f32 {G[i]}, {G[i]}"); o.append(f"v_sub_f32 {F[i]}, 1.0, {F[i]}")
                for i in range(4): o.append(f"v_mul_f32 {F[i]}, {F[i]}, {G[i]}")
                for i in range(2): o.append(f"v_cvt_pk_bf16_f32 {ZP.q(tt)[2*hf+i]}, {F[2*i]}, {F[2*i+1]}")
            o.append(("zw", tt))
        return o
    def cost(x):
        if isinstance(x, tuple): return 4
        return 8 if x.startswith(("v_exp", "v_rcp")) else 4
    def zread(s, wp, tt):
        C.lg(f"ds_read_b128 {ZF.q(wp & 1, 8).q(tt)}, {vZr} offset:{(4*s + wp)*2048 + tt*1024}", ("z", wp))
    m0 = idft(0)
    for ks in range(4):
        for r in range(4): afread(0, ks, r)
        A("s_nop 1"); A(m0[2*ks]); A(m0[2*ks+1])
    for ks in range(4):
        for r in range(4): afread(1, ks, r)
    for s in range(9):
        slots = []
        if s + 1 < 8: slots += [("i", m) for m in idft(s + 1)]
        if s >= 1:
            for wp in range(4):
                so = 4*(s-1) + wp
                for tau in range(4):
                    for tt in range(2):
                        d = ACC.q(4*tt + tau, 16)
                        c = d if so else 0
                        slots.append(("g", (wp, tau, tt, f"v_mfma_f32_32x32x16_bf16 {d}, {ZF.q(wp&1, 8).q(tt)}, {WO.q(so % NW, 16).q(tau)}, {c}")))
        ni = 8 if s + 1 < 8 else 0
        post = [[] for _ in slots]
        if s >= 1:
            zread(s - 1, 0, 0); zread(s - 1, 0, 1); zread(s - 1, 1, 0); zread(s - 1, 1, 1)
            for wp in range(4):
                base = ni + 8*wp
                if wp + 2 < 4:
                    post[base + 6].append(lambda wp=wp: zread(s - 1, wp + 2, 0))
                    post[base + 7].append(lambda wp=wp: zread(s - 1, wp + 2, 1))
                so = 4*(s-1) + wp
                if so + NW < 32:
                    for tau in range(4): post[base + 2*tau + 1].append(lambda so=so, tau=tau: woload(so + NW, tau))
        valu = gate(s) if s < 8 else []
        tail = [("af", ks, r) for ks in range(4) for r in range(4)] if s + 2 < 8 else []
        def put(x):
            if isinstance(x, str): A(x)
            elif x[0] == "zw": C.lg(f"ds_write_b128 {vZw}, {ZP.q(x[1])} offset:{s*8192 + x[1]*1024}", "zw")
            else: afread(s + 2, x[1], x[2])
        work = valu + tail
        total = sum(cost(x) for x in work) + 4 * sum(len(p) for p in post)
        done = 0; wi = 0
        for si, (kind, arg) in enumerate(slots):
            if kind == "g":
                wp, tau, tt, ins = arg
                if tau == 0 and tt == 0: C.wait(vm=("w", 4*(s-1) + wp), lg=("z", wp))
                A(ins)
            else: A(arg)
            for fn in post[si]: fn(); done += 4
            tgt = total * (si + 1) / len(slots) if s else min(total, 24 * (si + 1))
            while wi < len(work) and done + cost(work[wi]) / 2 <= tgt:
                put(work[wi]); done += cost(work[wi]); wi += 1
        while wi < len(work): put(work[wi]); wi += 1
        if s < 8:
            C.wait(lg="zw"); A("s_barrier")
    if stamps: stamp(A, 2)
    A("s_nop 9")
    k = 0
    for tt in range(2):
        for r in range(16 if tt == 0 else 10):
            if tt == 1 and r == 8: A("s_mov_b32 exec_hi, 0")
            o = t.q(k & 7, 2); k += 1
            row = 32*tt + 8*(r >> 2) + (r & 3)
            for i in range(2):
                A(f"v_cvt_pk_bf16_f32 {o[i]}, {ACC.q(4*tt + 2*i, 16)[r]}, {ACC.q(4*tt + 2*i + 1, 16)[r]}")
            if r % 2 == 0: A(f"s_add_u32 s34, s33, {row*2048}")
            A(f"buffer_store_dwordx2 {o}, {vO}, s[16:19], s34 offen offset:{(r&1)*2048} {stflag}")
    if stamps:
        A("s_mov_b64 exec, -1\ns_waitcnt vmcnt(0)"); stamp(A, 3); stamp_store(A, 4, 2, 6, 7, sWAVE, t.b)
    A("LC_end:\ns_endpgm")
    return kd(name, 512, 256)
```

```python
import sys
from asmlib import *
from common import *
import kb
HDR = open("header.txt").read()
def build(path, kernels, **kw):
    launch = []; body = []; kds = []; seen = set()
    for k in kernels:
        A = Asm()
        if k == "A":
            import ka
            name = "conva_kernel"; d = ka.gen_a(A, name, **kw.get("A", {})); geo = (ka.GRID_A, 256, ka.LDS_A)
        elif k == "B":
            name = "convb_kernel"; d = kb.gen_b(A, name, **kw.get("B", {})); geo = (256, 256, kb.LDS_B)
        elif k == "C":
            import kc
            name = "standalone__autoregressive_conv_wavenet__speech_kernel"; d = kc.gen_c(A, name, **kw.get("C", {})); geo = (kc.GRID_C, kc.BLOCK_C, kc.LDS_C)
        elif k == "E":
            name = "empty_kernel"; head(A, name); A("s_endpgm"); d = kd(name, 8, 8, 16); geo = (256, 256, 0)
        launch.append(f"; @launch kernel={name} grid=({geo[0]},1,1) block=({geo[1]},1,1) lds={geo[2]}")
        if k in seen: continue
        seen.add(k)
        bad = check(A.lines)
        for x in bad: print("HAZARD", k, x)
        assert not bad
        body.append(A.text()); kds.append(d)
    txt = HDR + "\n".join(launch) + '\n.amdgcn_target "amdgcn-amd-amdhsa--gfx950"\n.text\n' + "".join(body) + "".join(kds)
    open(path, "w").write(txt)
if __name__ == "__main__":
    build(sys.argv[1], sys.argv[2], **(eval(sys.argv[3]) if len(sys.argv) > 3 else {}))
```

```python
from asmlib import *
from common import *
GRID_A = 256
LDS_A = 131072

def gen_a(A, name="conva_kernel", stamps=False, warm=True, stflag="", ldflag="", wflag=""):
    va = Alloc("v", 1, 128)
    vX = va(1); vS = va(1); t = va(8)
    vTR = va(4); vDW = va(2); vDR = va(4)
    TWF = va(32); AF = va(32); D = va(32); PK = va(8)
    sWAVE = 36
    head(A, name)
    A(f"s_cmp_ge_u32 s2, {256 if warm else 192}\ns_cbranch_scc1 LA_end")
    if stamps: stamp(A, 0)
    A("s_load_dwordx4 s[4:7], s[0:1], 0\ns_load_dwordx2 s[20:21], s[0:1], 16\ns_load_dwordx2 s[22:23], s[0:1], 40")
    A(f"v_lshrrev_b32 {t[0]}, 6, v0\nv_and_b32 v0, 63, v0")
    A(f"v_readfirstlane_b32 s{sWAVE}, {t[0]}")
    A("s_cmp_ge_u32 s2, 160\ns_cbranch_scc1 LA_other")
    A("s_lshr_b32 s30, s2, 3\ns_and_b32 s31, s2, 7")
    A(f"s_lshl_b32 s32, s30, 2\ns_add_u32 s32, s32, s{sWAVE}")
    A("s_cmp_ge_u32 s32, 40\ns_cselect_b32 s33, 40, 0\ns_cselect_b32 s34, 4096000, 0\ns_sub_u32 s32, s32, s33")
    A("s_mul_i32 s32, s32, 102400\ns_lshl_b32 s33, s31, 7\ns_add_u32 s32, s32, s33\ns_sub_u32 s32, s32, 28672")
    A(f"v_lshrrev_b32 {t[0]}, 3, v0\nv_lshlrev_b32 {vX}, 11, {t[0]}")
    A(f"v_and_b32 {t[0]}, 6, {t[0]}\nv_and_b32 {t[1]}, 7, v0\nv_xor_b32 {t[0]}, {t[0]}, {t[1]}")
    A(f"v_lshl_add_u32 {vX}, {t[0]}, 4, {vX}\nv_add_u32 {vX}, s32, {vX}")
    A(f"s_lshl_b32 s35, s{sWAVE}, 14")
    A("s_waitcnt lgkmcnt(0)")
    A("s_add_u32 s8, s4, s34\ns_addc_u32 s9, s5, 0\ns_mov_b32 s10, 4096000\ns_mov_b32 s11, 0x20000")
    C = Cnt(A)
    for par in range(2):
        for i in range(8):
            A(f"s_add_u32 m0, s35, {par*8192 + i*1024}")
            A(f"v_add_u32 {t[2+(i&1)]}, {par*1024 + i*16384}, {vX}")
            C.vm(f"buffer_load_dwordx4 {t[2+(i&1)]}, s[8:11], 0 offen {ldflag} lds", ("x", par))
    srd(A, 12, 22, 23, WS_V, V_SIZE)
    A(f"v_lshrrev_b32 {t[0]}, 2, v0")
    A(f"v_lshlrev_b32 {t[1]}, 7, {t[0]}\nv_add_u32 {t[1]}, s35, {t[1]}")
    A(f"v_and_b32 {t[2]}, 3, v0\nv_lshl_add_u32 {t[1]}, {t[2]}, 3, {t[1]}")
    A(f"v_bfe_u32 {t[0]}, v0, 3, 2")
    for tau in range(4):
        A(f"v_xor_b32 {t[2]}, {tau}, {t[0]}\nv_lshl_add_u32 {vTR[tau]}, {t[2]}, 5, {t[1]}")
    A(f"v_and_b32 {t[0]}, 15, v0\nv_lshlrev_b32 {t[1]}, 9, {t[0]}\nv_lshrrev_b32 {t[2]}, 4, v0\nv_lshl_add_u32 {t[1]}, {t[2]}, 7, {t[1]}")
    A(f"v_add_u32 {t[1]}, 0x10000, {t[1]}\nv_and_b32 {t[0]}, 7, v0\ns_lshl_b32 s33, s{sWAVE}, 1\nv_xor_b32 {t[0]}, s33, {t[0]}")
    A(f"v_lshl_add_u32 {vDW[0]}, {t[0]}, 4, {t[1]}\nv_xor_b32 {vDW[1]}, 16, {vDW[0]}")
    A(f"v_lshrrev_b32 {t[0]}, 3, v0\nv_lshlrev_b32 {t[1]}, 7, {t[0]}\ns_lshl_b32 s33, s{sWAVE}, 13\ns_add_u32 s33, s33, 0x10000\nv_add_u32 {t[1]}, s33, {t[1]}")
    A(f"v_and_b32 {t[0]}, 7, v0\nv_lshrrev_b32 {t[2]}, 5, v0\nv_xor_b32 {t[0]}, {t[0]}, {t[2]}")
    for f3 in range(4):
        A(f"v_xor_b32 {t[2]}, {2*f3}, {t[0]}\nv_lshl_add_u32 {vDR[f3]}, {t[2]}, 4, {t[1]}")
    A(f"v_lshrrev_b32 {t[0]}, 3, v0\nv_lshlrev_b32 {vS}, 8, {t[0]}\nv_and_b32 {t[0]}, 7, v0\nv_lshl_add_u32 {vS}, {t[0]}, 4, {vS}")
    A("s_lshr_b32 s33, s30, 1\ns_cmp_ge_u32 s33, 5\ns_cselect_b32 s37, 153600, 0\ns_lshl_b32 s33, s33, 11\ns_add_u32 s37, s37, s33")
    A(f"s_and_b32 s33, s30, 1\ns_lshl_b32 s33, s33, 7\ns_add_u32 s37, s37, s33\ns_mul_i32 s33, s31, 20480\ns_add_u32 s37, s37, s33")
    A(f"s_mul_i32 s33, s{sWAVE}, {8*327680}\ns_add_u32 s37, s37, s33")
    A(f"v_and_b32 {t[0]}, 15, v0\nv_or_b32 {t[0]}, 1, {t[0]}\nv_cvt_f32_u32 {t[0]}, {t[0]}")
    for g in range(1, 4): A(f"v_add_f32 {t[g]}, {float_hex(16*g)}, {t[0]}")
    A(f"v_and_b32 {t[4]}, 1, v0\nv_cvt_f32_u32 {t[4]}, {t[4]}\nv_mul_f32 {t[4]}, 0x3e800000, {t[4]}")
    A(f"v_lshrrev_b32 {t[5]}, 4, v0\nv_cvt_f32_u32 {t[5]}, {t[5]}\nv_mul_f32 {t[5]}, {float_hex(4/128)}, {t[5]}")
    for ks in range(2):
        for x in range(8): A(f"v_add_f32 {AF[x]}, {float_hex((32*ks + 16*(x>>2) + (x&3))/128)}, {t[5]}")
        for g in range(4):
            for x in range(8): A(f"v_fma_f32 {D[x]}, {t[g]}, {AF[x]}, {t[4]}")
            for x in range(8): A(f"v_cos_f32 {D[x]}, {D[x]}")
            for p in range(4): A(f"v_cvt_pk_bf16_f32 {TWF.q(2*g+ks)[p]}, {D[2*p]}, {D[2*p+1]}")
    if stamps: stamp(A, 1); A("s_waitcnt lgkmcnt(0)")
    units = [(par, kc) for par in range(2) for kc in range(2)]
    def reads(n):
        par, kc = units[n]
        C.wait(vm=("x", par))
        for tl in range(2):
            for ks in range(2):
                for h in range(2):
                    dst = AF.q(n & 1, 16).q(2*tl + ks)[2*h:2*h+2]
                    C.lg(f"ds_read_b64_tr_b16 {dst}, {vTR[2*kc+tl]} offset:{par*8192 + (32*ks+16*h)*128}", ("a", n))
    reads(0)
    for n, (par, kc) in enumerate(units):
        if n + 1 < 4: reads(n + 1)
        C.wait(lg=("a", n))
        af = AF.q(n & 1, 16)
        for ks in range(2):
            for g in range(4):
                for tl in range(2):
                    d = D.q(2*g + tl)
                    A(f"v_mfma_f32_16x16x32_bf16 {d}, {af.q(2*tl+ks)}, {TWF.q(2*g+ks)}, {d if ks else 0}")
        A("s_nop 1")
        for g in range(4):
            pk = PK.q(g & 1)
            for p in range(4):
                d = D.q(2*g + (p >> 1))
                A(f"v_cvt_pk_bf16_f32 {pk[p]}, {d[2*(p&1)]}, {d[2*(p&1)+1]}")
            C.lg(f"ds_write_b128 {vDW[par]}, {pk} offset:{kc*32768 + g*8192}", "w")
    C.wait_all(lg=True); A("s_barrier")
    if stamps: stamp(A, 2); A("s_waitcnt lgkmcnt(0)")
    OUT = R("v", TWF.b, 64)
    for n in range(16):
        kc, fl = n & 1, n >> 1
        C.lg(f"ds_read_b128 {OUT.q(n)}, {vDR[fl&3]} offset:{kc*32768 + fl*1024}", ("o", n))
        if n == 11:
            pass
        if n >= 8:
            m = n - 8
            C.wait(lg=("o", m))
            A(f"s_add_u32 s33, s37, {(m>>1)*327680 + (m&1)*10240}")
            A(f"buffer_store_dwordx4 {OUT.q(m)}, {vS}, s[12:15], s33 offen {stflag}")
    for m in range(8, 16):
        C.wait(lg=("o", m))
        A(f"s_add_u32 s33, s37, {(m>>1)*327680 + (m&1)*10240}")
        A(f"buffer_store_dwordx4 {OUT.q(m)}, {vS}, s[12:15], s33 offen {stflag}")
    A("s_branch LA_fin")
    A("LA_other:")
    if stamps: stamp(A, 1); stamp(A, 2)
    if warm: A("s_cmp_ge_u32 s2, 192\ns_cbranch_scc1 LA_warm")
    A("s_sub_u32 s30, s2, 160")
    A("s_and_b32 s31, s30, 3\ns_lshr_b32 s32, s30, 4\ns_lshl_b32 s32, s32, 2\ns_add_u32 s31, s31, s32\ns_lshl_b32 s31, s31, 16")
    A("s_bfe_u32 s32, s30, 0x20002\ns_lshl_b32 s32, s32, 14\ns_add_u32 s31, s31, s32")
    A(f"s_lshl_b32 s32, s{sWAVE}, 8\ns_add_u32 s31, s31, s32")
    A(f"v_lshrrev_b32 {t[0]}, 5, v0\nv_lshlrev_b32 {vX}, 12, {t[0]}\nv_and_b32 {t[0]}, 31, v0\nv_lshl_add_u32 {vX}, {t[0]}, 3, {vX}")
    A("s_add_u32 s32, s31, 8192")
    A("s_waitcnt lgkmcnt(0)")
    srd(A, 8, 20, 21, 0, WO_SIZE); srd(A, 12, 22, 23, WS_WO, WO_SIZE)
    for e in range(8):
        A(f"buffer_load_dwordx2 {AF.q(e, 2)}, {vX}, s[8:11], s{31 + (e>>2)} offen offset:{(e&3)*1024} {ldflag}")
    A(f"v_lshlrev_b32 {vS}, 4, v0\ns_lshl_b32 s33, s{sWAVE}, 17\ns_lshl_b32 s34, s30, 12\ns_add_u32 s33, s33, s34")
    A("s_mov_b32 s34, 0x05040100\ns_mov_b32 s35, 0x07060302\ns_waitcnt vmcnt(0)")
    for tau in range(4):
        for p in range(4):
            A(f"v_perm_b32 {D.q(tau)[p]}, {AF.q(2*p+1, 2)[tau>>1]}, {AF.q(2*p, 2)[tau>>1]}, s{34 + (tau&1)}")
        A(f"buffer_store_dwordx4 {D.q(tau)}, {vS}, s[12:15], s33 offen offset:{tau*1024} {stflag}")
    if warm:
        A("s_branch LA_fin")
        A("LA_warm:")
        A(f"s_sub_u32 s30, s2, 192\ns_mul_i32 s30, s30, 245760\ns_lshl_b32 s31, s{sWAVE}, 12\ns_add_u32 s30, s30, s31\ns_add_u32 s31, s30, 245760")
        A(f"v_lshlrev_b32 {vX}, 4, v0\ns_waitcnt lgkmcnt(0)")
        srd(A, 8, 6, 7, 0, W_SIZE)
        A("LA_wl:")
        for i in range(4): A(f"buffer_load_dwordx4 {D.q(i)}, {vX}, s[8:11], s30 offen offset:{i*1024} {wflag}")
        A("s_add_u32 s30, s30, 16384\ns_waitcnt vmcnt(12)\ns_cmp_lt_u32 s30, s31\ns_cbranch_scc1 LA_wl")
    A("LA_fin:")
    if stamps:
        A("s_waitcnt vmcnt(0)"); stamp(A, 3); stamp_store(A, 4, 0, 22, 23, sWAVE, t.b)
    A("LA_end:\ns_endpgm")
    return kd(name, 128, 128)
```
